```python
import torch

def _softmax(x, axis=-1):
    return torch.softmax(x, dim=axis)
def _gelu(x):
    return torch.nn.functional.gelu(x, approximate="tanh")
def _silu(x):
    return torch.nn.functional.silu(x)
def _sigmoid(x):
    return torch.sigmoid(x)
def _layernorm(x, axis=-1, eps=1e-5):
    m = x.mean(dim=axis, keepdim=True)
    v = x.var(dim=axis, keepdim=True, unbiased=False)
    return (x - m) / torch.sqrt(v + eps)
def _scatter_add(tgt, idx, src, axis=0):
    return tgt.clone().index_add_(axis, idx, src)
def _segment_sum(src, seg, n):
    out = torch.zeros((n,) + src.shape[1:], dtype=src.dtype)
    return out.index_add_(0, seg, src)
def _pad(x, pw):
    flat = tuple(v for pair in reversed(pw) for v in pair)
    return torch.nn.functional.pad(x, flat)

kernel_name = 'gated_mix__linear_attn_block__dense_activation_mish__prompt'

def setup_inputs():

    _w = (lambda a: (lambda t: t.to(torch.bfloat16) if t.is_floating_point() else t)(torch.as_tensor(a)))
    def _A_setup():
        B, S, D = 1, 2048, 512
        return {
            "x": _w((lambda *s: torch.randn(*s, dtype=torch.bfloat16) * 0.05)(B, S, D)),
            "wqkv": _w((lambda *s: torch.randn(*s, dtype=torch.bfloat16) * 0.8)(D, 3 * D)),
            "wo": _w((lambda *s: torch.randn(*s, dtype=torch.bfloat16) * 0.1)(D, D)),
        }
    _A_in = _A_setup()

    def _B_setup():
        B, S, D, F = 1, 2048, 512, 1792
        return {
            "x": _w((lambda *s: torch.randn(*s, dtype=torch.bfloat16) * 0.05)(B, S, D)),
            "w1": _w((lambda *s: torch.randn(*s, dtype=torch.bfloat16) * 12.8)(D, F) * (D ** -0.5)),
            "b1": _w((lambda *s: torch.randn(*s, dtype=torch.bfloat16) * 0.4)(F)),
            "w2": _w((lambda *s: torch.randn(*s, dtype=torch.bfloat16) * 0.05)(F, D) * (F ** -0.5)),
        }
    _B_in = _B_setup()

    return {
        "A_x": _A_in["x"],
        "A_wqkv": _A_in["wqkv"],
        "A_wo": _A_in["wo"],
        "B_x": _B_in["x"],
        "B_w1": _B_in["w1"],
        "B_b1": _B_in["b1"],
        "B_w2": _B_in["w2"],
        "gate_w": _w((lambda *s: torch.randn(*s, dtype=torch.bfloat16) * 0.05)(512) * 16.0),
    }

def reference(A_x, A_wqkv, A_wo, B_x, B_w1, B_b1, B_w2, gate_w):
    def _A_ref(x, wqkv, wo):
        B, S, D = x.shape
        H = 32; Dh = D // H
        qkv = (lambda x, *d: x.permute(*d))((x @ wqkv).reshape(B, S, 3, H, Dh), 2, 0, 3, 1, 4)
        q, k, v = qkv[0], qkv[1], qkv[2]
        phi = lambda t: torch.where(t > 0, t + 1, torch.exp(t)) + 1e-6
        pq, pk = phi(q), phi(k)
        kv = torch.einsum("bhsd,bhse->bhde", pk, v)
        z = torch.einsum("bhsd->bhd", pk)
        num = torch.einsum("bhqd,bhde->bhqe", pq, kv)
        den = torch.einsum("bhqd,bhd->bhq", pq, z)[..., None] + 1e-6
        o = num / den
        return (lambda x, *d: x.permute(*d))(o, 0, 2, 1, 3).reshape(B, S, D) @ wo

    def _B_ref(x, w1, b1, w2):
        h = torch.einsum("bsd,df->bsf", x, w1) + b1
        sp = torch.log1p(torch.exp(-torch.abs(h))) + torch.where(h > 0, h, torch.zeros_like(h))
        act = h * torch.tanh(sp)
        return torch.einsum("bsf,fd->bsd", act, w2)

    x = A_x
    g = _sigmoid((x * gate_w).sum(-1, keepdims=True))
    a = _A_ref(x, A_wqkv, A_wo)
    b = _B_ref(x, B_w1, B_b1, B_w2)
    return g * a + (1 - g) * b
```

```python
import sys
NAME = "gated_mix__linear_attn_block__dense_activation_mish__prompt"
def hdr(launch_lines):
    return "\n".join(launch_lines) + '\n.amdgcn_target "amdgcn-amd-amdhsa--gfx950"\n.text\n'
def kd(name, vgpr=256, accum=256, sgpr=102):
    return f""".section .rodata,"a"
.p2align 6
.amdhsa_kernel {name}
  .amdhsa_next_free_vgpr {vgpr}
  .amdhsa_next_free_sgpr {sgpr}
  .amdhsa_accum_offset {accum}
  .amdhsa_group_segment_fixed_size 0
  .amdhsa_kernarg_size 88
  .amdhsa_user_sgpr_count 2
  .amdhsa_user_sgpr_kernarg_segment_ptr 1
  .amdhsa_system_sgpr_workgroup_id_x 1
.end_amdhsa_kernel
.text
"""
def kstart(name):
    return f".globl {name}\n.p2align 8\n.type {name},@function\n{name}:\n"

if __name__ == "__main__":
  pass
if __name__=="__main__": open("e1.s","w").write(hdr(["; @launch grid=(256,1,1) block=(512,1,1) lds=0"]) + kstart(NAME+"_kernel") + "s_endpgm\n" + kd(NAME+"_kernel"))
if __name__=="__main__": open("e2.s","w").write(hdr(["; @launch kernel=a_kernel grid=(256,1,1) block=(512,1,1) lds=0","; @launch kernel=a_kernel grid=(256,1,1) block=(512,1,1) lds=0"]) + kstart("a_kernel") + "s_endpgm\n" + kd("a_kernel"))
if __name__=="__main__": open("e4.s","w").write(hdr(["; @launch kernel=a_kernel grid=(256,1,1) block=(512,1,1) lds=0"]*4) + kstart("a_kernel") + "s_endpgm\n" + kd("a_kernel"))

NST=4
def stamp(j):
    return f"""s_memrealtime s[90:91]
s_waitcnt lgkmcnt(0)
v_mov_b32 v252, s90
v_mov_b32 v253, s91
buffer_store_dwordx2 v[252:253], v250, s[92:95], 0 offen offset:{j*8}
"""
def loadkern(fn, arr, nwaves=8, xdup=False):
    R, C = arr
    s = hdr([f"; @launch grid=(256,1,1) block=({nwaves*64},1,1) lds=163840"]) + kstart(NAME+"_kernel")
    s += f"""s_cmp_ge_u32 s2, 256
s_cbranch_scc1 L_end
s_memrealtime s[88:89]
s_load_dwordx4 s[4:7], s[0:1], 0     ; x, wqkv
s_load_dwordx2 s[8:9], s[0:1], 32    ; w1
s_load_dwordx2 s[10:11], s[0:1], 80  ; ws
s_waitcnt lgkmcnt(0)
s_add_u32 s92, s10, 0x8000000
s_addc_u32 s93, s11, 0
s_mov_b32 s94, 0x100000
s_mov_b32 s95, 0x20000
s_mul_i32 s3, s2, {NST*8}
v_mov_b32 v250, s3
v_mov_b32 v252, s88
v_mov_b32 v253, s89
buffer_store_dwordx2 v[252:253], v250, s[92:95], 0 offen offset:0
; x SRD s[12:15]
s_mov_b32 s12, s4
s_mov_b32 s13, s5
s_mov_b32 s14, 0x200000
s_mov_b32 s15, 0x20000
s_mov_b32 s16, s6
s_mov_b32 s17, s7
s_mov_b32 s18, 0x180000
s_mov_b32 s19, 0x20000
; w1 SRD s[20:23]
s_mov_b32 s20, s8
s_mov_b32 s21, s9
s_mov_b32 s22, 0x1c0000
s_mov_b32 s23, 0x20000
s_and_b32 s24, s2, 7       ; xcd
s_lshr_b32 s25, s2, 3      ; idx 0..31
"""
    nr = 16//R
    import math
    lg = lambda v: int(math.log2(v))
    s += f"""s_and_b32 s26, s24, {nr-1}
s_lshl_b32 s26, s26, {lg(R)}
s_and_b32 s27, s25, {R-1}
s_add_u32 s26, s26, s27      ; r
s_lshr_b32 s28, s24, {lg(nr)}
s_lshl_b32 s28, s28, {lg(C)}
s_lshr_b32 s29, s25, {lg(R)}
s_add_u32 s28, s28, s29      ; c
v_lshrrev_b32 v1, 6, v0      ; wave
v_and_b32 v2, 63, v0         ; lane
v_readfirstlane_b32 s30, v1
"""
    rows_per_wave = 32 if xdup else 128//nwaves
    s += f"""v_and_b32 v3, 15, v2
v_lshrrev_b32 v4, 4, v2
v_lshlrev_b32 v3, 10, v3     ; row*1024
v_lshlrev_b32 v4, 4, v4
v_add_u32 v3, v3, v4
s_and_b32 s31, s30, {(128//rows_per_wave)-1}
s_mul_i32 s31, s31, {rows_per_wave*1024}
s_lshl_b32 s32, s26, 17
s_add_u32 s31, s31, s32
s_add_u32 s33, s31, 16384
"""
    s += f"""v_and_b32 v5, 3, v2
v_lshrrev_b32 v6, 2, v2
v_lshlrev_b32 v5, 4, v5
v_mul_u32_u24 v6, 3072, v6
v_add_u32 v5, v5, v6
v_and_b32 v7, 15, v2
v_lshrrev_b32 v8, 4, v2
v_lshlrev_b32 v7, 4, v7
v_mul_u32_u24 v8, 3584, v8
v_add_u32 v7, v7, v8
s_lshl_b32 s34, s28, 6       ; c*64 bytes
s_mul_i32 s35, s30, {16*3072}
s_add_u32 s34, s34, s35
s_mul_i32 s36, s28, 224
s_mul_i32 s37, s30, {4*3584}
s_add_u32 s36, s36, s37
s_lshl_b32 s38, s30, 10
"""
    vb = 16
    nx = (rows_per_wave//16)*16
    ops = []
    xi = 0
    nq = 3*32//nwaves
    nh = 128//nwaves
    qi = 0; hi = 0
    lds = 0
    for ks in range(16):
        for rt in range(rows_per_wave//16):
            so = "s31" if rt == 0 else "s33"
            ops.append(f"buffer_load_dwordx4 v[{vb+4*xi}:{vb+4*xi+3}], v3, s[12:15], {so} offen offset:{ks*64}")
            xi += 1
        while qi < nq*(ks+1)//16:
            rowblk = qi // 3; t = qi % 3
            ops.append(f"s_add_u32 m0, s38, {(lds % 152)*1024}\ns_add_u32 s39, s34, {rowblk*nwaves*16*3072 + t*1024}\nbuffer_load_dwordx4 v5, s[16:19], s39 offen lds")
            lds += nwaves; qi += 1
        while hi < nh*(ks+1)//16:
            ops.append(f"s_add_u32 m0, s38, {(lds % 152)*1024}\ns_add_u32 s39, s36, {hi*nwaves*4*3584}\nbuffer_load_dwordx4 v7, s[20:23], s39 offen lds")
            lds += nwaves; hi += 1
    s += "\n".join(ops) + "\n"
    s += stamp(1)
    s += "s_waitcnt vmcnt(0)\ns_barrier\n"
    s += stamp(2)
    s += "s_waitcnt vmcnt(0)\n" + stamp(3)
    s += "L_end:\ns_endpgm\n" + kd(NAME+"_kernel")
    open(fn,"w").write(s)
if __name__=="__main__": loadkern("l84.s", (8,4))
if __name__=="__main__": loadkern("l48.s", (4,8))
if __name__=="__main__": loadkern("l216.s", (2,16))
if __name__=="__main__": loadkern("l84d.s", (8,4), xdup=True)
```

```python
from mb1 import hdr, kd, kstart, NAME
s = hdr(["; @launch grid=(256,1,1) block=(64,1,1) lds=163840"]) + kstart(NAME+"_kernel")
s += ".rept 24576\nv_add_f32_e64 v8, v1, v2\n.endr\ns_endpgm\n" + kd(NAME+"_kernel")
open("flush.s","w").write(s)
```

```python
from mb1 import hdr, kd, kstart, NAME
def gen(fn, segs, nwaves=8, pre=""):
    s = hdr([f"; @launch grid=(256,1,1) block=({nwaves*64},1,1) lds=163840"]) + kstart(NAME+"_kernel")
    s += f"""s_cmp_ge_u32 s2, 256
s_cbranch_scc1 L_end
s_load_dwordx2 s[10:11], s[0:1], 80
s_load_dwordx2 s[12:13], s[0:1], 0
s_waitcnt lgkmcnt(0)
s_add_u32 s92, s10, 0x8000000
s_addc_u32 s93, s11, 0
s_mov_b32 s94, 0x100000
s_mov_b32 s95, 0x20000
s_mov_b32 s14, 0x200000
s_mov_b32 s15, 0x20000
v_lshrrev_b32 v1, 6, v0
v_and_b32 v2, 63, v0
v_readfirstlane_b32 s30, v1
v_mov_b32 v29, 0
v_lshlrev_b32 v3, 4, v0
"""
    for k in range(32): s += f"buffer_load_dwordx4 v[{64+4*k}:{67+4*k}], v3, s[12:15], 0 offen offset:{(k%4)*1024}\n" + ("v_add_u32 v3, 0x4000, v3\n" if k % 4 == 3 else "")
    s += "s_waitcnt vmcnt(0)\nv_lshlrev_b32 v3, 4, v0\n"
    for k in range(16): s += f"ds_write_b128 v3, v[{64+4*k}:{67+4*k}] offset:{k*8192 % 65536}\n" + ("v_add_u32 v3, 0x10000, v3\n" if k == 7 else "")
    s += "s_waitcnt lgkmcnt(0)\nv_lshlrev_b32 v3, 4, v2\nv_lshlrev_b32 v4, 3, v2\n" + pre
    for j, (body, reps) in enumerate(segs):
        s += f"s_barrier\ns_mov_b32 s40, 0\ns_memtime s[60:61]\ns_memrealtime s[62:63]\ns_waitcnt lgkmcnt(0)\n.p2align 6\nL_s{j}:\n" + body
        s += f"s_add_u32 s40, s40, 1\ns_cmp_lt_u32 s40, {reps}\ns_cbranch_scc1 L_s{j}\ns_nop 15\ns_memtime s[64:65]\ns_memrealtime s[66:67]\ns_waitcnt lgkmcnt(0)\n"
        s += f"s_sub_u32 s64, s64, s60\ns_sub_u32 s66, s66, s62\nv_writelane_b32 v29, s64, {2*j}\nv_writelane_b32 v29, s66, {2*j+1}\n"
    s += f"s_mul_i32 s3, s2, {nwaves}\ns_add_u32 s3, s3, s30\ns_lshl_b32 s3, s3, 8\nv_lshlrev_b32 v5, 2, v2\nbuffer_store_dword v29, v5, s[92:95], s3 offen\n"
    s += "L_end:\ns_endpgm\n" + kd(NAME+"_kernel")
    open(fn, "w").write(s)
def rep(f, n): return "".join(f(i) + "\n" for i in range(n))
exp = rep(lambda i: f"v_exp_f32 v{32+i%16}, v{64+i%32}", 64)
fma = rep(lambda i: f"v_fma_f32 v{32+i%16}, v{64+i%32}, v{100+i%16}, v{120+i%8}", 64)
fmac = rep(lambda i: f"v_mul_f32 v{32+i%16}, v{64+i%32}, v{100+i%16}", 64)
pk = rep(lambda i: f"v_pk_fma_f32 v[{32+2*(i%8)}:{33+2*(i%8)}], v[{64+2*(i%16)}:{65+2*(i%16)}], v[{100+2*(i%8)}:{101+2*(i%8)}], v[{120+2*(i%4)}:{121+2*(i%4)}]", 64)
cvt = rep(lambda i: f"v_cvt_pk_bf16_f32 v{32+i%16}, v{64+i%32}, v{100+i%16}", 64)
def mish8(b):
    t = ""
    for k in range(4): t += f"v_pk_mul_f32 v[{32+2*k}:{33+2*k}], v[{b+2*k}:{b+2*k+1}], s[50:51]\n"
    for k in range(8): t += f"v_exp_f32 v{32+k}, v{32+k}\n"
    for k in range(4): t += f"v_pk_add_f32 v[{32+2*k}:{33+2*k}], v[{32+2*k}:{33+2*k}], 1.0 op_sel_hi:[1,0]\n"
    for k in range(4): t += f"v_pk_fma_f32 v[{32+2*k}:{33+2*k}], v[{32+2*k}:{33+2*k}], v[{32+2*k}:{33+2*k}], 1.0 op_sel_hi:[1,1,0]\n"
    for k in range(8): t += f"v_rcp_f32 v{32+k}, v{32+k}\n"
    for k in range(4): t += f"v_pk_fma_f32 v[{32+2*k}:{33+2*k}], v[{32+2*k}:{33+2*k}], -2.0, 1.0 op_sel_hi:[1,0,0]\n"
    for k in range(4): t += f"v_pk_mul_f32 v[{32+2*k}:{33+2*k}], v[{32+2*k}:{33+2*k}], v[{b+2*k}:{b+2*k+1}]\n"
    for k in range(4): t += f"v_cvt_pk_bf16_f32 v{48+k}, v{32+2*k}, v{33+2*k}\n"
    return t
def mish8n(b):
    t = ""
    for k in range(8): t += f"v_mul_f32 v{32+k}, s50, v{b+k}\n"
    for k in range(8): t += f"v_exp_f32 v{32+k}, v{32+k}\n"
    for k in range(8): t += f"v_add_f32 v{32+k}, 1.0, v{32+k}\n"
    for k in range(8): t += f"v_fma_f32 v{32+k}, v{32+k}, v{32+k}, 1.0\n"
    for k in range(8): t += f"v_rcp_f32 v{32+k}, v{32+k}\n"
    for k in range(8): t += f"v_fma_f32 v{32+k}, v{32+k}, -2.0, 1.0\n"
    for k in range(8): t += f"v_mul_f32 v{32+k}, v{32+k}, v{b+k}\n"
    for k in range(4): t += f"v_cvt_pk_bf16_f32 v{48+k}, v{32+2*k}, v{33+2*k}\n"
    return t
def mish8i(b):
    t = ""
    for k in range(8):
        t += f"v_exp_f32 v{32+k}, v{32+k}\n"
        t += f"v_fma_f32 v{40+k}, v{40+k}, -2.0, 1.0\n"
        t += f"v_mul_f32 v{40+k}, v{40+k}, v{b+k}\n"
        if k & 1: t += f"v_cvt_pk_bf16_f32 v{48+k//2}, v{40+k-1}, v{40+k}\n"
    for k in range(8):
        t += f"v_add_f32 v{40+k}, 1.0, v{32+k}\n"
        t += f"v_fma_f32 v{40+k}, v{40+k}, v{40+k}, 1.0\n"
        t += f"v_mul_f32 v{32+k}, s50, v{b+8+k}\n"
        if k: t += f"v_rcp_f32 v{40+k-1}, v{40+k-1}\n"
    t += f"v_rcp_f32 v47, v47\n"
    return t
pre = "s_mov_b32 s50, 0x3fb8aa3b\ns_mov_b32 s51, 0x3fb8aa3b\n"
segs = [(exp, 16), (fma, 16), (fmac, 16), (pk, 16), (cvt, 16), (mish8(64) + mish8(72), 16), (mish8n(64) + mish8n(72), 16), (mish8i(64) + mish8i(72), 16)]
if __name__ == "__main__":
    gen("v8.s", segs, 8, pre); gen("v4.s", segs, 4, pre)
```

```python
from mb6 import gen
def ld(off, fl="sc1", b="s47"):
    return f"s_add_u32 s43, {b}, {off}\nbuffer_load_dwordx4 v[64:67], v3, s[16:19], s43 offen {fl}\ns_waitcnt vmcnt(0)\n"
def st(off, fl="sc1", w=True):
    return f"s_add_u32 s43, s47, {off}\nbuffer_store_dwordx4 v[64:67], v3, s[16:19], s43 offen {fl}\n" + ("s_waitcnt vmcnt(0)\ns_sleep 20\n" if w else "")
def spf(off, step, n=8):
    t = f"s_add_u32 s50, s10, s47\ns_addc_u32 s51, s11, 0\ns_add_u32 s50, s50, {off}\ns_addc_u32 s51, s51, 0\n"
    for i in range(n): t += f"s_load_dword s{70+i}, s[50:51], {i*step}\n"
    return t + "s_waitcnt lgkmcnt(0)\n"
pre2 = """s_mov_b32 s16, s10
s_mov_b32 s17, s11
s_mov_b32 s18, 0x8000000
s_mov_b32 s19, 0x20000
s_lshl_b32 s47, s2, 10
s_xor_b32 s48, s47, 0x2000
"""
M = 1 << 20
segs = [(st(0, ""), 1), (ld(0), 1), (st(M, "sc1", False) + st(M, ""), 1), (ld(M), 1), (st(2*M, "sc1", False) + st(2*M, "") + "s_sleep 60\n", 1), (ld(2*M, "sc1", "s48"), 1), (st(3*M, "nt"), 1), (ld(3*M), 1), (st(4*M, "sc0"), 1), (ld(4*M), 1)]
gen("kl1.s", segs, 1, pre2)
segs = [(spf(0, 128), 1), (ld(0), 1), (spf(M + 64, 128), 1), (ld(M), 1), (spf(2*M, 64, 15), 1), (ld(2*M), 1), (ld(3*M), 1), (ld(3*M), 1), (st(5*M, ""), 1), (ld(5*M, ""), 1)]
gen("kl2.s", segs, 1, pre2)
segs = [(spf(0, 128), 1), (ld(0, ""), 1), (spf(M + 64, 128), 1), (ld(M, ""), 1), (spf(2*M, 64, 15), 1), (ld(2*M, ""), 1), (ld(3*M, ""), 1), (ld(3*M, ""), 1), (ld(5*M, "") + "s_sleep 60\n", 1), (ld(5*M, "", "s48"), 1)]
gen("kl3.s", segs, 1, pre2)
segs = [(st(0, "") + "s_sleep 60\n", 1), (ld(0, "", "s48"), 1), (st(M, "sc1") + "s_sleep 60\n", 1), (ld(M, "", "s48"), 1), (st(2*M, "sc1", False) + st(2*M, "") + "s_sleep 60\n", 1), (ld(2*M, "", "s48"), 1), (st(3*M, "") + "s_sleep 60\n", 1), (ld(3*M, "sc0", "s48"), 1), (st(4*M, "") + "s_sleep 60\n", 1), (ld(4*M, "nt", "s48"), 1)]
gen("kl4.s", segs, 1, pre2)
def spfx(off, step, n, w):
    t = f"s_add_u32 s50, s10, s47\ns_addc_u32 s51, s11, 0\ns_add_u32 s50, s50, {off}\ns_addc_u32 s51, s51, 0\n"
    for i in range(n): t += (f"s_load_dword s70, s[50:51], {i*step}\n" if w == 1 else f"s_load_dwordx{w} s[72:{71+w}], s[50:51], {i*step}\n")
    return t + "s_waitcnt lgkmcnt(0)\n"
segs = [(spfx(0, 64, 16, 1), 1), (ld(0, ""), 1), (spfx(M, 64, 16, 16), 1), (ld(M, ""), 1), (spfx(2*M, 32, 32, 1), 1), (ld(2*M, ""), 1), (spfx(3*M + 60, 128, 8, 2), 1), (ld(3*M, ""), 1), (spfx(4*M + 32, 128, 8, 16), 1), (ld(4*M, ""), 1)]
gen("kl5.s", segs, 1, pre2)
```
